```python
import torch

def _softmax(x, axis=-1):
    return torch.softmax(x, dim=axis)
def _gelu(x):
    return torch.nn.functional.gelu(x, approximate="tanh")
def _silu(x):
    return torch.nn.functional.silu(x)
def _sigmoid(x):
    return torch.sigmoid(x)
def _layernorm(x, axis=-1, eps=1e-5):
    m = x.mean(dim=axis, keepdim=True)
    v = x.var(dim=axis, keepdim=True, unbiased=False)
    return (x - m) / torch.sqrt(v + eps)
def _scatter_add(tgt, idx, src, axis=0):
    return tgt.clone().index_add_(axis, idx, src)
def _segment_sum(src, seg, n):
    out = torch.zeros((n,) + src.shape[1:], dtype=src.dtype)
    return out.index_add_(0, seg, src)
def _pad(x, pw):
    flat = tuple(v for pair in reversed(pw) for v in pair)
    return torch.nn.functional.pad(x, flat)

kernel_name = 'standalone__mha_softmax__near_ridge'

def setup_inputs():

    _w = (lambda a: (lambda t: t.to(torch.bfloat16) if t.is_floating_point() else t)(torch.as_tensor(a)))
    B, H, Sq, Sk, D = 16, 32, 368, 1024, 128
    return {
        "q": _w((lambda *s: torch.randn(*s, dtype=torch.bfloat16) * 0.8)(B, H, Sq, D)),
        "k": _w((lambda *s: torch.randn(*s, dtype=torch.bfloat16) * 0.8)(B, H, Sk, D)),
        "v": _w((lambda *s: torch.randn(*s, dtype=torch.bfloat16) * 0.05)(B, H, Sk, D)),
    }

def reference(q, k, v):
    scale = q.shape[-1] ** -0.5
    scores = torch.einsum("bhqd,bhkd->bhqk", q, k) * scale
    p = _softmax(scores, axis=-1)
    return torch.einsum("bhqk,bhkd->bhqd", p, v)
```

```python
import random, math, re

RANK = {'S': 0, 'T': 1}
DUR = {'V': 4, 'E': 8, 'P': 8, 'D': 8, 'T': 4, 'W': 24, 'X': 28, 'S': 4}


class Op:
    def __init__(s, kind, text, lo, hi, seq, wait=None, early=0.0):
        s.kind, s.text, s.lo, s.hi, s.seq, s.wait = kind, text, lo, hi, seq, wait
        s.preds, s.succs, s.g = [], [], None
        s.early = early
        s.key = (RANK.get(kind, 2), seq)


def gap_cost(ops):
    t = 4; lastT = -99; prev = None; nT = 0
    for o in ops:
        k = o.kind
        if k == 'S':
            t += 4
        else:
            i = max(t, 8)
            if k == 'T':
                if prev in ('V', 'E', 'P'): i += 4
                if nT >= 2: i += 4
                nT += 1; lastT = i
            t = i + DUR[k]
        prev = k
    return max(t, lastT + 8, 16)


class Region:
    def __init__(s, name):
        s.name = name; s.mf = []; s.ops = []; s.tail = None

    def mfma(s, text):
        s.mf.append(text); return len(s.mf) - 1

    def op(s, kind, text, lo=0, hi=None, after=(), wait=None, early=0.0):
        o = Op(kind, text, max(lo, 0), hi, len(s.ops), wait, early)
        for p, d in after:
            if p is None: continue
            s.dep(p, o, d)
        s.ops.append(o); return o

    def dep(s, p, o, d):
        assert p.seq < o.seq, (p.text, o.text)
        if d == 0 and p.key > o.key: d = 1
        o.preds.append((p, d)); p.succs.append((o, d))

    def schedule(s, iters=200000, seed=1, last_empty=False, verbose=True):
        N = len(s.mf); rnd = random.Random(seed)
        top = N - 2 if last_empty else N - 1
        for o in s.ops:
            o.hi = top if o.hi is None else min(o.hi, top)
        for o in s.ops:
            for p, d in o.preds: o.lo = max(o.lo, p.lo + d)
        for o in reversed(s.ops):
            for q, d in o.succs: o.hi = min(o.hi, q.hi - d)
        for o in s.ops:
            assert o.lo <= o.hi, (s.name, o.text, o.lo, o.hi)
        best = None
        for cap in range(16, 400, 4):
            gaps, forced = s._greedy(cap, N)
            tot = sum(gap_cost(g) for g in gaps)
            if best is None or tot < best[0]: best = (tot, cap, [o.g for o in s.ops])
            if not forced: break
        if tot <= best[0] * 1.01: best = (tot, cap, [o.g for o in s.ops])
        for o, g in zip(s.ops, best[2]): o.g = g
        gaps = [[] for _ in range(N)]
        for o in s.ops: gaps[o.g].append(o)
        for g in gaps: g.sort(key=lambda o: o.key)
        cost = [gap_cost(g) for g in gaps]
        cur = sum(cost) + sum(o.early * o.g for o in s.ops); bestc = cur; bestg = [o.g for o in s.ops]
        mov = [o for o in s.ops if o.lo < o.hi]
        T0, T1 = 2.5, 0.25
        for it in range(iters if mov else 0):
            T = T0 * (T1 / T0) ** (it / iters)
            o = mov[rnd.randrange(len(mov))]
            lo = o.lo; hi = o.hi
            for p, d in o.preds:
                if p.g + d > lo: lo = p.g + d
            for q, d in o.succs:
                if q.g - d < hi: hi = q.g - d
            if lo >= hi: continue
            ng = rnd.randint(lo, hi)
            if ng == o.g: continue
            og = o.g
            a = [x for x in gaps[og] if x is not o]
            b = gaps[ng] + [o]
            sw = None
            if gaps[ng] and rnd.random() < 0.5:
                c = gaps[ng][rnd.randrange(len(gaps[ng]))]
                ok = c.lo <= og <= c.hi
                if ok:
                    for p, d in c.preds:
                        if p is o or p.g + d > og: ok = False; break
                if ok:
                    for q, d in c.succs:
                        if q is o or q.g - d < og: ok = False; break
                if ok:
                    sw = c; b = [x for x in b if x is not c]; a = a + [c]; a.sort(key=lambda x: x.key)
            b.sort(key=lambda x: x.key)
            ca, cb = gap_cost(a), gap_cost(b)
            dl = ca + cb - cost[og] - cost[ng] + o.early * (ng - og) + (sw.early * (og - ng) if sw else 0)
            if dl <= 0 or rnd.random() < math.exp(-dl / T):
                gaps[og], gaps[ng] = a, b; cost[og], cost[ng] = ca, cb; o.g = ng
                if sw: sw.g = og
                cur += dl
                if cur < bestc - 1e-9: bestc = cur; bestg = [x.g for x in s.ops]
        for o, g in zip(s.ops, bestg): o.g = g
        s.gaps = [[] for _ in range(N)]
        for o in s.ops: s.gaps[o.g].append(o)
        for g in s.gaps: g.sort(key=lambda o: o.key)
        for o in s.ops:
            assert o.lo <= o.g <= o.hi
            for p, d in o.preds: assert p.g + d <= o.g
        s.cycles = sum(gap_cost(g) for g in s.gaps)
        if verbose:
            print(f"; region {s.name}: {N} mfma, {len(s.ops)} ops, model {s.cycles} cyc (mfma floor {16 * N}), greedy {best[0]} cap {best[1]}")
        return s

    def _greedy(s, cap, N):
        for o in s.ops: o.g = None
        gaps = [[] for _ in range(N)]; forced = False
        pend = sorted(s.ops, key=lambda o: (o.hi, o.seq))
        for g in range(N):
            cur = gaps[g]; again = True
            while again:
                again = False
                for o in pend:
                    if o.g is not None or o.lo > g: continue
                    if any(p.g is None or p.g + d > g for p, d in o.preds): continue
                    trial = sorted(cur + [o], key=lambda x: x.key)
                    fits = gap_cost(trial) <= cap
                    if fits or o.hi == g:
                        if not fits and g < N - 1: forced = True
                        o.g = g; cur[:] = trial; again = True
            pend = [o for o in pend if o.g is None]
        assert not pend
        return gaps, forced

    def pattern(s):
        return " ".join("".join(o.kind for o in g) or "-" for g in s.gaps)

    def linear(s):
        L = []
        for m, g in zip(s.mf, s.gaps):
            L.append(m); L += g
        return L


class Stream:
    def __init__(s):
        s.segs = []
        s.cur = None; s.lg = []; s.vm = []

    def seg(s, name):
        s.cur = []; s.segs.append((name, s.cur)); return s.cur

    def emit(s, x, tok=None):
        if isinstance(x, Op):
            if x.wait:
                return s.wait(x.wait[0], x.wait[1])
            tok = x; x = x.text
        for line in x.split("\n"):
            line = line.strip()
            if not line: continue
            s.cur.append(line)
            if line.startswith("ds_"):
                tok = tok or object(); s.lg.append(tok)
            elif line.startswith("buffer_"):
                tok = tok or object(); s.vm.append(tok)
            m = re.match(r"s_waitcnt (.*)", line)
            if m:
                for nm, q in (("lgkmcnt", s.lg), ("vmcnt", s.vm)):
                    mm = re.search(nm + r"\((\d+)\)", line)
                    if mm:
                        k = int(mm.group(1))
                        if len(q) > k: del q[:len(q) - k]
        return tok

    def wait(s, which, targets):
        q = s.lg if which == 'lg' else s.vm
        idx = [i for i, t in enumerate(q) if any(t is u for u in targets)]
        if not idx: return None
        k = min(len(q) - 1 - max(idx), 15 if which == 'lg' else 63)
        s.emit(f"s_waitcnt {'lgkmcnt' if which == 'lg' else 'vmcnt'}({k})")

    def emit_all(s, L):
        for x in L: s.emit(x)


def regs(tok):
    tok = tok.strip()
    m = re.fullmatch(r"-?\|?([vas])\[(\d+):(\d+)\]\|?", tok)
    if m: return [f"{m.group(1)}{i}" for i in range(int(m.group(2)), int(m.group(3)) + 1)]
    m = re.fullmatch(r"-?\|?([vas])(\d+)\|?", tok)
    if m: return [f"{m.group(1)}{m.group(2)}"]
    if tok in ("vcc", "m0", "exec"): return [tok]
    return []


TRANS = ("v_exp_", "v_log_", "v_rcp_", "v_rsq_", "v_sqrt_", "v_sin_", "v_cos_")


def parse(line):
    line = line.split(";")[0].strip()
    if not line or line.endswith(":") or line.startswith("."): return None
    p = line.split(None, 1); mn = p[0]
    ops = [x.strip() for x in p[1].split(",")] if len(p) > 1 else []
    if ops: ops[-1:] = ops[-1].split()[:1]; mods = line
    R = lambda l: [r for x in l for r in regs(x)]
    if mn.startswith("v_mfma"):
        return dict(c='M', w=R(ops[:1]), r=R(ops[1:3]), cc=R(ops[3:4]), mn=mn)
    if mn.startswith("v_permlane") and "swap" in mn:
        return dict(c='V', w=R(ops), r=R(ops), perm=True, mn=mn)
    if mn.startswith("v_"):
        rd = R(ops[1:])
        if mn.startswith(("v_fmac", "v_dot2c", "v_writelane")): rd += R(ops[:1])
        if mn.startswith("v_cndmask") and len(ops) == 3: rd.append("vcc")
        return dict(c='V', w=R(ops[:1]), r=rd, trans=mn.startswith(TRANS), rfl=mn.startswith(("v_readfirstlane", "v_readlane")), dpp=("dpp" in line or "row_" in line or "quad_perm" in line), mn=mn)
    if mn.startswith("ds_read"): return dict(c='L', w=R(ops[:1]), r=R(ops[1:]), mn=mn)
    if mn.startswith("ds_"): return dict(c='L', w=[], r=R(ops), mn=mn)
    if mn.startswith("buffer_load"):
        if re.search(r"\blds\b", line): return dict(c='G', w=[], r=R(ops) + ["m0"], mn=mn, dma=True)
        return dict(c='G', w=R(ops[:1]), r=R(ops[1:]), mn=mn)
    if mn.startswith("buffer_store"):
        return dict(c='G', w=[], r=R(ops), st=R(ops[:1]) if ("x4" in mn or "x3" in mn) else [], mn=mn)
    if mn == "s_nop": return dict(c='N', n=int(ops[0]) + 1, w=[], r=[], mn=mn)
    if mn == "s_waitcnt": return dict(c='W', w=[], r=[], line=line, mn=mn)
    if mn.startswith(("s_cmp", "s_cbranch", "s_branch", "s_barrier", "s_endpgm", "s_setprio", "s_sleep")):
        return dict(c='S', w=[], r=R(ops), mn=mn)
    if mn.startswith("s_"): return dict(c='S', w=R(ops[:1]), r=R(ops[1:]), mn=mn)
    raise ValueError(line)


def check(trace, fix=True, name=""):
    nfix = 0
    while True:
        t = 0; n = 0; lastM = -99
        wr = {}
        cread = {}
        stread = {}
        lg = []; vm = []
        formal = 0; redo = False
        for seg in trace:
            i = 0
            while i < len(seg):
                d = parse(seg[i])
                if d is None: i += 1; continue
                c = d['c']
                tt = t + 1
                if c == 'M': tt = max(tt, lastM + 4)
                need = 0; nf = 0
                def req(p, ws):
                    nonlocal need, nf
                    need = max(need, ws - (tt - p[0] - 1)); nf = max(nf, ws - (n + 1 - p[1] - 1))
                allr = d['r'] + d.get('cc', [])
                for q, nm in ((lg, 'lgkm'), (vm, 'vm')):
                    for e in q:
                        bad = set(e) & set(allr + d['w'])
                        assert not bad, f"{name}: {seg[i]} touches {bad} with pending {nm} load"
                for r in allr:
                    p = wr.get(r)
                    if not p: continue
                    k = p[2]
                    if k == 'M':
                        if c == 'M':
                            if r in d['r']: req(p, 8)
                            elif p[3] != d['cc']: req(p, 6)
                        else: req(p, 8)
                    elif k == 'V':
                        if c == 'M': req(p, 2)
                        elif c == 'V':
                            if r[0] == 's' or r == 'vcc': req(p, 2)
                            if p[3] and not d.get('trans'): req(p, 1)
                            if p[3] and d.get('trans'): req(p, 1)
                            if d.get('perm') or d.get('dpp'): req(p, 2)
                            if d.get('rfl'): req(p, 1)
                        elif c == 'G' and r[0] == 's': req(p, 5)
                        elif c in 'LG' and p[3]: req(p, 1)
                    elif k == 'S':
                        if r == 'm0' and c == 'G': req(p, 1)
                for r in d['w']:
                    p = wr.get(r)
                    if p and p[2] == 'M':
                        if c != 'M': req(p, 8)
                        elif p[3] != d['w']: req(p, 6)
                    if p and p[2] == 'V' and c == 'M': req(p, 2)
                    if c == 'V' and r in cread: req(cread[r], 3)
                    if r in stread: req(stread[r], 2)
                if need > 0:
                    assert fix, f"{name}: hazard at {seg[i]} need {need}"
                    seg.insert(i, f"s_nop {need - 1}"); nfix += 1; continue
                if nf > 0: formal += 1
                if c == 'N': tt += d['n'] - 1; n += d['n'] - 1
                t = tt; n += 1
                if c == 'M':
                    lastM = t
                    for r in d['cc']: cread[r] = (t, n)
                    for r in d['w']: wr[r] = (t, n, 'M', d['w'])
                elif c == 'V':
                    for r in d['w']: wr[r] = (t, n, 'V', d.get('trans'))
                elif c == 'S':
                    for r in d['w']: wr[r] = (t, n, 'S', None)
                elif c == 'L':
                    lg.append(d['w'])
                    for r in d['w']: wr.pop(r, None)
                elif c == 'G':
                    vm.append(d['w'])
                    for r in d['w']: wr.pop(r, None)
                    for r in d.get('st', []): stread[r] = (t, n)
                elif c == 'W':
                    for nm, q in (("lgkmcnt", lg), ("vmcnt", vm)):
                        mm = re.search(nm + r"\((\d+)\)", d['line'])
                        if mm:
                            k = int(mm.group(1))
                            if len(q) > k: del q[:len(q) - k]
                i += 1
            if redo: break
        if not redo: return nfix, formal
```

```python
import sys, struct, argparse
sys.path.insert(0, "tools")
from asmlib import *

NAME = "standalone__mha_softmax__near_ridge"
CH = 1056; TILE = 8 * CH; D = 4
KBASE = 0; VBASE = D * TILE; QBASE = 2 * D * TILE; LDS = QBASE + 23 * 4096
HQ = 94208
f2u = lambda x: struct.unpack("<I", struct.pack("<f", x))[0]
SCALE = f2u(128 ** -0.5 * 1.4426950408889634)
LLO = f2u(2.0 ** -20); LHI = f2u(2.0 ** 30)

sQ, sK, sV, sO = 12, 16, 20, 24
sW, sCNT, sR, sD, sT0, sT1, sQS, sC, sMASK, sTMP, sLLO, sQM = 28, 29, 30, 31, 32, 33, 34, 35, 36, 37, 38, 39
sOS = 40
sST = 48
srd = lambda b: f"s[{b}:{b+3}]"
vKb, vVb, vK, vV = 1, 2, 3, 4
vQa = [5, 6, 7, 8]; vO = 9; vD = 10; vQd = [11, 12, 13, 14]; vCHK = [15, 16]
vL = [17, 18, 19, 20, 21, 22]; vLAND = [24, 28]; vT = [32, 33]; vRC = [34, 35]; vT2 = [36, 37]
PB = [40, 44, 232]; SB = [48, 56, 224]
vOr = lambda t, db: 64 + t * 32 + db * 4
aQ = lambda t, ks: t * 16 + ks * 4
aK = lambda kb, ks: 96 + (kb * 4 + ks) * 4
aV = lambda db: 128 + db * 4
aL = lambda t: 160 + t * 4
aONE = 184
r4 = lambda p, x: f"{p}[{x}:{x+3}]"
MF = "v_mfma_f32_16x16x32_bf16"


class Role:
    def __init__(s, name, nq, ones):
        s.name, s.nq, s.ones = name, nq, ones
        s.buf = [0, 1, 0, 1, 0, 1] if nq == 6 else [0, 1, 0, 1, 2]
        s.B = nq == 5


def kread(kb, ks): return f"ds_read_b128 {r4('a', aK(kb, ks))}, v{vK} offset:{KBASE + kb * 512 + ks * 64}"
def vread(db, kb): return f"ds_read_b64_tr_b16 a[{aV(db) + 2 * kb}:{aV(db) + 2 * kb + 1}], v{vV} offset:{VBASE + kb * 512 + db * 32}"
def qread(t, ks, dst): return f"ds_read_b128 {r4('v', dst)}, v{vQa[ks]} offset:{t * 4096}"
def prescale(x, tmp, a):
    return [f"v_lshlrev_b32 v{tmp}, 16, v{x}", f"v_and_b32 v{x}, s{sMASK}, v{x}", f"v_mul_f32 v{tmp}, s{sC}, v{tmp}",
            f"v_mul_f32 v{x}, s{sC}, v{x}", f"v_cvt_pk_bf16_f32 v{x}, v{tmp}, v{x}", f"v_accvgpr_write_b32 a{a}, v{x}"]


class Gen:
    def __init__(s, o):
        s.o = o
        s.nt = " nt" if o.nt else ""
        s.ntq = " nt" if o.ntq else ""
        s.nts = " nt" if o.nts else ""

    def dma_tile(s, base_s, t0, t1):
        L = []
        for sr, lb in ((sK, KBASE), (sV, VBASE)):
            for j in range(8):
                c = lb + j * CH - (j & 3) * 1024
                m = f"s_mov_b32 m0, {c + base_s}" if isinstance(base_s, int) else f"s_add_u32 m0, {base_s}, {c}"
                L.append((m, f"buffer_load_dwordx4 v{vD}, {srd(sr)}, {t1 if j >> 2 else t0} offen offset:{(j & 3) * 1024}{s.nt} lds"))
        return L

    def dma_q(s, soff):
        return [f"buffer_load_dwordx4 v{vQd[i]}, {srd(sQ)}, {soff} offen offset:{i * 1024}{s.ntq} lds" for i in range(4)]

    def region(s, ro, name, s0, s1, loop=None, qtok=None, vmw=None, qdma=None):
        o = s.o; nq = ro.nq; R = Region(f"{ro.name}.{name}"); LAT = o.lat; EXD = o.exd
        END = 64 * nq
        st = []
        for x in range(s0, s1):
            e = dict(x=x, p0=len(R.mf), pv=None, qk=None, one=None)
            if 0 <= x - 2 < END:
                n, t = divmod(x - 2, nq); first = n % 32 == 0
                P = r4('v', PB[ro.buf[t]])
                e['pv'] = [R.mfma(f"{MF} {r4('v', vOr(t, db))}, {r4('a', aV(db))}, {P}, {'0' if first else r4('v', vOr(t, db))}") for db in range(8)]
                if t in ro.ones:
                    e['one'] = R.mfma(f"{MF} {r4('a', aL(t))}, {r4('a', aONE)}, {P}, {'0' if first else r4('a', aL(t))}")
            if x < END:
                n, t = divmod(x, nq); S = SB[ro.buf[t]]
                e['qk'] = [[R.mfma(f"{MF} {r4('v', S + 4 * kb)}, {r4('a', aK(kb, ks))}, {r4('a', aQ(t, ks))}, {'0' if ks == 0 else r4('v', S + 4 * kb)}") for ks in range(4)] for kb in range(2)]
            st.append(e)
        if s1 > END + 1:
            for _ in range(10): R.mfma("")
        N = len(R.mf); top = N - 2 if loop else N - 1
        byx = {e['x']: e for e in st}
        shi = N - 3 if loop else None
        adds = {}; linit = {}; lread = {}
        land_free = [None, None]; tfree = [None, None]; rcfree = [None, None]; t2free = [None, None]
        unit = [0]
        lastv = []; lastdma = None

        def qload(t, lo_ks, hi_ks, tok):
            w = R.op('S', None, wait=('vm', tok)) if tok else None
            for ks in range(4):
                u = unit[0] & 1; unit[0] += 1
                rd = R.op('T', qread(t, ks, vLAND[u]), after=[(w, 0), (land_free[u], 1)], early=0.02)
                wt = R.op('S', None, wait=('lg', [rd]), after=[(rd, o.qlat)])
                for j in range(4):
                    tm = j & 1; x = vLAND[u] + j
                    c = prescale(x, vT[tm], aQ(t, ks) + j)
                    a = R.op('V', c[0], after=[(wt, 0), (tfree[tm], 0)])
                    b = R.op('V', c[1], after=[(a, 0)])
                    m1 = R.op('V', c[2], after=[(a, 0)])
                    m2 = R.op('V', c[3], after=[(b, 0)])
                    cv = R.op('V', c[4], after=[(m1, 0), (m2, 0)])
                    tfree[tm] = cv
                    wr = R.op('V', c[5], lo=lo_ks[ks], hi=hi_ks[ks], after=[(cv, 0), (land_free[u] if j else None, 0)])
                    land_free[u] = wr

        def epilogue(t, h, e_last, e_next):
            b = t & 1; rc = vRC[b]; t2 = vT2[b]
            if t in ro.ones:
                l0 = R.op('V', f"v_accvgpr_read_b32 v{rc}, a{aL(t)}", lo=(e_last['one'] + EXD if e_last else 0),
                          hi=(e_next['one'] - 1 if e_next else None), after=[(rcfree[b], 0)])
            else:
                dp = [(a, 0) for a in adds.get((h, t), [])]
                m1 = R.op('V', f"v_mov_b32 v{rc}, v{vL[t]}", after=dp + [(rcfree[b], 0)])
                m2 = R.op('V', f"v_mov_b32 v{t2}, v{vL[t]}", after=dp + [(t2free[b], 0)])
                lread[t] = [m1, m2]
                p1 = R.op('P', f"v_permlane32_swap_b32 v{rc}, v{t2}", after=[(m1, 1), (m2, 1)])
                a1 = R.op('V', f"v_add_f32 v{rc}, v{rc}, v{t2}", after=[(p1, 0)])
                m3 = R.op('V', f"v_mov_b32 v{t2}, v{rc}", after=[(a1, 0)])
                p2 = R.op('P', f"v_permlane16_swap_b32 v{rc}, v{t2}", after=[(m3, 1)])
                l0 = R.op('V', f"v_add_f32 v{rc}, v{rc}, v{t2}", after=[(p2, 0)])
            c1 = R.op('V', f"v_subrev_u32 v{t2}, s{sLLO}, v{rc}", after=[(l0, 0), (t2free[b], 0)])
            c2 = R.op('V', f"v_max_u32 v{vCHK[h]}, v{vCHK[h]}, v{t2}", after=[(c1, 0)])
            t2free[b] = c2
            rcp = R.op('E', f"v_rcp_f32 v{rc}, v{rc}", after=[(c1, 0)])
            so = R.op('S', f"s_mov_b32 s{sOS + t}, {h * HQ + t * 4096}", hi=shi)
            prev = None
            for j in range(4):
                x = vOr(t, 2 * j); cv = []
                for hh in range(4):
                    db = 2 * j + (hh >> 1); r = x + 2 * hh
                    lo = e_last['pv'][db] + EXD if e_last else 0
                    lo = min(lo, top)
                    a = R.op('V', f"v_mul_f32 v{r}, v{r}, v{rc}", lo=lo, after=[(rcp, 0), (prev, 0)])
                    bb = R.op('V', f"v_mul_f32 v{r+1}, v{r+1}, v{rc}", after=[(a, 0)])
                    prev = bb
                    cv.append(R.op('V', f"v_cvt_pk_bf16_f32 v{x + hh}, v{r}, v{r+1}", after=[(bb, 0)] + ([(cv[-1], 0)] if cv else [])))
                p1 = R.op('P', f"v_permlane16_swap_b32 v{x}, v{x+2}", after=[(cv[3], 0)])
                p2 = R.op('P', f"v_permlane16_swap_b32 v{x+1}, v{x+3}", after=[(p1, 0)])
                R.op('X', f"buffer_store_dwordx4 {r4('v', x)}, v{vO}, {srd(sO)}, s{sOS + t} offen offset:{j * 64}{s.nts}",
                     hi=(e_next['pv'][2 * j] - 2 if e_next else None), after=[(p2, 0), (so, 0)])
            rcfree[b] = prev

        def dma_ops(pairs, first_after):
            nonlocal lastdma
            for m, d in pairs:
                mo = R.op('S', m, hi=shi, after=first_after + [(lastdma, 1)]) if m else None
                lastdma = R.op('D', d, after=[(mo, 1), (lastdma, o.dgap)], early=o.dearly)
                first_after = []

        for h in (0, 1):
            for t in range(nq):
                xl = (32 * h + 31) * nq + t + 2
                if xl == s0 - 1: epilogue(t, h, None, byx.get(xl + nq))
        for t in range(nq):
            xq = 32 * nq + t
            if xq in byx and xq - nq < s0: qload(t, [0] * 4, [byx[xq]['qk'][0][ks] - 2 for ks in range(4)], None)
        if ro.B and s0 == 0:
            dma_ops(s.dma_tile(3 * TILE, f"s{sT0}", f"s{sT1}"), [])
            dma_ops([("s_mov_b32 m0, 0x30000", s.dma_q(f"s{sQ+2}")[0])] + [(None, d) for d in s.dma_q(f"s{sQ+2}")[1:]], [])

        for i, e in enumerate(st):
            x = e['x']; nx = byx.get(x + 1); pe = byx.get(x - 1)
            if s0 == 0 and x + 1 < nq:
                qload(x + 1, [0] * 4, [nx['qk'][0][ks] - 2 for ks in range(4)], qtok[x + 1])
            if 0 <= x - 1 < END:
                n, t = divmod(x - 1, nq); S = SB[ro.buf[t]]; P = PB[ro.buf[t]]; first = n % 32 == 0
                rdy = [pe['qk'][kb][3] + EXD for kb in range(2)] if pe else [-5 + EXD, -1 + EXD]
                chi = nx['pv'][0] - 2 if nx else N - 2
                ahi = [nx['qk'][kb][0] - 1 for kb in range(2)] if nx and nx['qk'] else [None, None]
                ex = [R.op('E', f"v_exp_f32 v{S+k}, v{S+k}", lo=rdy[k >> 2]) for k in range(8)]
                for k in range(4):
                    R.op('V', f"v_cvt_pk_bf16_f32 v{P+k}, v{S+2*k}, v{S+2*k+1}", hi=chi, after=[(ex[2 * k], 1), (ex[2 * k + 1], 1)])
                if t not in ro.ones:
                    al = adds.setdefault((n // 32, t), [])
                    if first:
                        ini = R.op('V', f"v_add_f32 v{vL[t]}, v{S}, v{S+1}", hi=ahi[0], after=[(ex[0], 1), (ex[1], 1)] + [(q, 0) for q in lread.get(t, [])])
                        linit[t] = ini; al.append(ini)
                    for k in range(2 if first else 0, 8):
                        al.append(R.op('V', f"v_add_f32 v{vL[t]}, v{vL[t]}, v{S+k}", hi=ahi[k >> 2], after=[(ex[k], 1), (linit.get(t), 0)]))
            if e['qk'] and x % nq == nq - 1 and x + 1 < END:
                lo = byx[x - (nq - 4)]['p0']
                dsave = R.op('S', f"s_mov_b32 s{sD}, s{sR}", lo=lo, hi=shi, after=[(lastdma, 1)]) if ro.B else None
                a = R.op('S', f"s_add_u32 s{sCNT}, s{sCNT}, 1", lo=lo)
                b = R.op('S', f"s_and_b32 s{sTMP}, s{sCNT}, {D - 1}", after=[(a, 0)])
                c = R.op('S', f"s_mul_i32 s{sR}, s{sTMP}, {TILE}", after=[(b, 0), (dsave, 0)])
                uk = R.op('V', f"v_add_u32 v{vK}, s{sR}, v{vKb}", after=[(c, 0)])
                uv = R.op('V', f"v_add_u32 v{vV}, s{sR}, v{vVb}", after=[(c, 0)] + [(q, 0) for q in lastv])
                bp = e['p0'] + o.barpos
                if ro.B:
                    t0 = R.op('S', f"s_add_u32 s{sT0}, s{sT0}, 8192", lo=lo, after=[(lastdma, 1)])
                    t1 = R.op('S', f"s_add_u32 s{sT1}, s{sT0}, 4096", after=[(t0, 0)])
                    wv = R.op('S', f"s_waitcnt vmcnt({vmw.pop(0)})", lo=bp - 1, hi=bp - 1, after=[(lastdma, 1)])
                bar = R.op('S', "s_barrier", lo=bp, hi=bp)
                for kb in range(2):
                    for ks in range(4):
                        use = nx['qk'][kb][ks]
                        rd = R.op('T', kread(kb, ks), lo=e['qk'][kb][ks], hi=use - LAT, after=[(bar, 0), (uk, 1)], early=0.02)
                        R.op('S', None, lo=use - 1, hi=use - 1, wait=('lg', [rd]), after=[(rd, 1)])
                s.uv = uv
                if ro.B:
                    dma_ops(s.dma_tile(f"s{sD}", f"s{sT0}", f"s{sT1}"), [(bar, 0), (t1, 0), (dsave, 0)])
                    if qdma == 'dummy':
                        dq = s.dma_q(f"s{sQ+2}")
                        dma_ops([("s_mov_b32 m0, 0x30000", dq[0])] + [(None, d) for d in dq[1:]], [])
                    elif qdma == 'real':
                        dq = s.dma_q(f"s{sQS}")
                        q1 = R.op('S', f"s_add_u32 s{sQS}, s{sQS}, 4096", lo=lo, hi=shi)
                        dma_ops([(f"s_add_u32 m0, s{sQS}, {(QBASE - HQ) & 0xffffffff}", dq[0])] + [(None, d) for d in dq[1:]], [(q1, 0)])
            if e['pv'] and (x - 2) % nq == nq - 1 and x - 1 < END:
                lastv = []
                for db in range(8):
                    use = nx['pv'][db]; rr = []
                    for kb in range(2):
                        rr.append(R.op('T', vread(db, kb), lo=e['pv'][db], hi=use - LAT, after=[(s.uv, 1)], early=0.02))
                    R.op('S', None, lo=use - 1, hi=use - 1, wait=('lg', rr), after=[(q, 1) for q in rr])
                    lastv += rr
            if e['qk'] and x // nq == 31:
                t = x % nq; xq = x + nq
                qload(t, [e['qk'][1][ks] for ks in range(4)], [byx[xq]['qk'][0][ks] - 2 for ks in range(4)], None) if xq in byx else None
            if e['pv'] and ((x - 2) // nq) % 32 == 31 and not loop:
                n, t = divmod(x - 2, nq)
                epilogue(t, n // 32, e, byx.get(x + nq))
        if loop:
            R.op('S', f"s_cmp_lg_u32 s{sCNT}, {loop[1]}", lo=N - 2, hi=N - 2)
        R.schedule(iters=(o.iters if loop else o.iters2), seed=o.seed, last_empty=bool(loop))
        if o.pat: print(";", R.pattern())
        L = R.linear()
        if loop: L = [f"{loop[0]}:"] + L + [f"s_cbranch_scc1 {loop[0]}"]
        return L

    def stamp(s, S, k):
        if s.o.prof: S.emit(f"s_memtime s[{sST + 2 * k}:{sST + 2 * k + 1}]")

    def common(s, S):
        o = s.o
        S.seg("common")
        E = S.emit
        s.stamp(S, 0)
        if o.prof: E(f"s_memrealtime s[{sST + 20}:{sST + 21}]")
        E(f"""s_cmp_ge_u32 s2, 256
s_cbranch_scc1 L_END
s_load_dwordx4 s[4:7], s[0:1], 0
s_load_dwordx4 s[8:11], s[0:1], 16
v_lshrrev_b32 v36, 6, v0
v_and_b32 v0, 63, v0
v_readfirstlane_b32 s{sW}, v36
v_lshlrev_b32 v{vD}, 4, v0
v_lshrrev_b32 v37, 4, v0
v_and_b32 v38, 15, v0
v_xor_b32 v39, v37, v38
v_lshlrev_b32 v39, 4, v39
v_lshl_add_u32 v{vQd[0]}, v37, 8, v39
v_xor_b32 v{vQd[1]}, 64, v{vQd[0]}
v_xor_b32 v{vQd[2]}, 0x80, v{vQd[0]}
v_xor_b32 v{vQd[3]}, 0xc0, v{vQd[0]}
s_lshl_b32 s3, s2, 19
s_mul_i32 s{sCNT}, s2, {2 * HQ}
s_mov_b32 s{sQ+2}, {2 * HQ}
s_mov_b32 s{sQ+3}, 0x20000
s_mov_b32 s{sK+2}, 0x80000
s_mov_b32 s{sK+3}, 0x20000
s_mov_b32 s{sV+2}, 0x80000
s_mov_b32 s{sV+3}, 0x20000
s_mov_b32 s{sO+2}, {2 * HQ}
s_mov_b32 s{sO+3}, 0x20000
s_mul_i32 s{sD}, s{sW}, {2 * CH}
s_lshl_b32 s{sT0}, s{sW}, 11
s_mul_i32 s{sQS}, s{sW}, {6 * 4096}
s_mov_b32 m0, s{sD}
s_waitcnt lgkmcnt(0)
s_add_u32 s{sK}, s6, s3
s_addc_u32 s{sK+1}, s7, 0
s_add_u32 s{sV}, s8, s3
s_addc_u32 s{sV+1}, s9, 0""")
        E(f"buffer_load_dwordx4 v{vD}, {srd(sK)}, s{sT0} offen{s.nt} lds")
        E(f"s_add_u32 m0, s{sD}, 32")
        E(f"s_add_u32 s{sQ}, s4, s{sCNT}")
        E(f"s_addc_u32 s{sQ+1}, s5, 0")
        E(f"buffer_load_dwordx4 v{vD}, {srd(sK)}, s{sT0} offen offset:1024{s.nt} lds")
        E(f"s_add_u32 m0, s{sD}, {VBASE}")
        E(f"s_add_u32 s{sO}, s10, s{sCNT}")
        E(f"s_addc_u32 s{sO+1}, s11, 0")
        E(f"buffer_load_dwordx4 v{vD}, {srd(sV)}, s{sT0} offen{s.nt} lds")
        E(f"s_add_u32 m0, s{sD}, {VBASE + 32}")
        E(f"s_mov_b32 s{sMASK}, 0xffff0000")
        E(f"buffer_load_dwordx4 v{vD}, {srd(sV)}, s{sT0} offen offset:1024{s.nt} lds")
        qtok = {}
        for t in range(5):
            E(f"s_add_u32 m0, s{sQS}, {QBASE + t * 4096}")
            E(f"s_add_u32 s{sTMP}, s{sQS}, {t * 4096}")
            qtok[t] = [E(d) for d in s.dma_q(f"s{sTMP}")]
        E(f"s_cmp_eq_u32 s{sW}, 3")
        E("s_cbranch_scc1 L_ROLE_B")
        return qtok

    def role(s, ro, S, qtok):
        o = s.o; E = S.emit; nq = ro.nq; tr = [S.segs[0][1]]
        tr.append(S.seg("pro"))
        if ro.B:
            E("L_ROLE_B:")
            for n in (1, 2):
                E(f"s_mov_b32 s{sT0}, {n * 8192}\ns_mov_b32 s{sT1}, {n * 8192 + 4096}")
                for m, d in s.dma_tile(n * TILE, f"s{sT0}", f"s{sT1}"): E(m); E("s_nop 0"); E(d)
            E("s_mov_b32 m0, 0x30000\ns_nop 0")
            for d in s.dma_q(f"s{sQ+2}"): E(d)
            E(f"s_mov_b32 s{sT0}, {3 * 8192}\ns_mov_b32 s{sT1}, {3 * 8192 + 4096}")
        else:
            E(f"s_add_u32 m0, s{sQS}, {QBASE + 5 * 4096}")
            E(f"s_add_u32 s{sTMP}, s{sQS}, {5 * 4096}")
            qtok = dict(qtok); qtok[5] = [E(d) for d in s.dma_q(f"s{sTMP}")]
        E(f"""s_mov_b32 s{sC}, {SCALE:#x}
s_mov_b32 s{sLLO}, {LLO:#x}
s_mov_b32 s{sTMP}, {CH}
v_and_b32 v36, 7, v0
v_mul_lo_u32 v{vKb}, v36, s{sTMP}
v_lshrrev_b32 v36, 3, v38
v_lshl_add_u32 v{vKb}, v36, 8, v{vKb}
v_lshl_add_u32 v{vKb}, v37, 4, v{vKb}
v_bfe_u32 v36, v0, 2, 3
v_mul_lo_u32 v{vVb}, v36, s{sTMP}
v_lshrrev_b32 v36, 5, v0
v_lshl_add_u32 v{vVb}, v36, 8, v{vVb}
v_and_b32 v35, 3, v0
v_lshl_add_u32 v{vVb}, v35, 3, v{vVb}
v_mov_b32 v{vK}, v{vKb}
v_mov_b32 v{vV}, v{vVb}
v_lshl_add_u32 v39, v38, 8, v39
s_add_u32 s{sTMP}, s{sQS}, {QBASE}
v_add_u32 v{vQa[0]}, s{sTMP}, v39
v_xor_b32 v35, 64, v39
v_add_u32 v{vQa[1]}, s{sTMP}, v35
v_xor_b32 v35, 0x80, v39
v_add_u32 v{vQa[2]}, s{sTMP}, v35
v_xor_b32 v35, 0xc0, v39
v_add_u32 v{vQa[3]}, s{sTMP}, v35
v_lshlrev_b32 v{vO}, 8, v38
v_add_u32 v{vO}, s{sQS}, v{vO}
v_and_b32 v35, 1, v37
v_lshl_add_u32 v{vO}, v35, 5, v{vO}
v_lshl_add_u32 v{vO}, v36, 4, v{vO}
v_mov_b32 v35, 0x3f803f80
v_mov_b32 v{vCHK[0]}, 0
v_mov_b32 v{vCHK[1]}, 0
v_accvgpr_write_b32 a{aONE}, v35
v_accvgpr_write_b32 a{aONE+1}, v35
v_accvgpr_write_b32 a{aONE+2}, v35
v_accvgpr_write_b32 a{aONE+3}, v35
s_mov_b32 s{sCNT}, 0
s_mov_b32 s{sR}, 0
s_mov_b32 s{sQS}, {HQ - 4096}""")
        S.wait('vm', qtok[0])
        E("s_barrier")
        s.stamp(S, 1)
        q0 = [E(qread(0, ks, 64 + 4 * ks)) for ks in range(4)]
        for kb in range(2):
            for ks in range(4): E(kread(kb, ks))
        for ks in range(4):
            S.wait('lg', [q0[ks]])
            cs = [prescale(64 + 4 * ks + j, 80 + j, aQ(0, ks) + j) for j in range(4)]
            for k in range(6):
                for j in range(4): E(cs[j][k])
            for db in (2 * ks, 2 * ks + 1):
                for kb in range(2): E(vread(db, kb))
        E("s_waitcnt lgkmcnt(0)")
        tr.append(S.seg("first"))
        S.emit_all(s.region(ro, "first", 0, nq + 3, qtok=qtok, vmw=[40], qdma='dummy'))
        s.stamp(S, 2)
        E(".p2align 3")
        l1 = S.seg("loop1"); tr += [l1, l1]
        assert not S.lg
        S.emit_all(s.region(ro, "loop1", nq + 3, 2 * nq + 3, loop=(f"L_{ro.name}1", 31), vmw=[44], qdma='real'))
        tr.append(S.seg("trans"))
        s.stamp(S, 3)
        assert not S.lg
        S.emit_all(s.region(ro, "trans", 31 * nq + 3, 33 * nq + 3, vmw=[44, 40]))
        s.stamp(S, 4)
        E(".p2align 3")
        l2 = S.seg("loop2"); tr += [l2, l2]
        assert not S.lg
        S.emit_all(s.region(ro, "loop2", 33 * nq + 3, 34 * nq + 3, loop=(f"L_{ro.name}2", 63), vmw=[32]))
        tr.append(S.seg("tail"))
        s.stamp(S, 5)
        assert not S.lg
        S.emit_all(s.region(ro, "tail", 63 * nq + 3, 64 * nq + 2))
        s.stamp(S, 6)
        E("s_waitcnt vmcnt(0)")
        s.stamp(S, 7)
        if o.prof:
            E(f"""s_memrealtime s[{sST + 22}:{sST + 23}]
s_load_dwordx2 s[4:5], s[0:1], 40
s_mov_b32 s6, 0x100000
s_mov_b32 s7, 0x20000
s_lshl_b32 s3, s2, 2
s_add_u32 s3, s3, s{sW}
s_lshl_b32 s3, s3, 7
s_waitcnt lgkmcnt(0)""")
            for k in range(12):
                E(f"v_mov_b32 v40, s{sST + 2 * k}\nv_mov_b32 v41, s{sST + 2 * k + 1}\nv_mov_b32 v42, {8 * k}")
                E(f"buffer_store_dwordx2 v[40:41], v42, s[4:7], s3 offen")
            E("s_waitcnt vmcnt(0)")
        E("s_endpgm")
        nf, formal = check(tr, name=ro.name)

    def build(s):
        o = s.o
        A = Role("A", 6, set(o.onesA)); B = Role("B", 5, set(o.onesB))
        SA = Stream(); qtok = s.common(SA)
        SB_ = Stream(); SB_.segs = [SA.segs[0]]; SB_.vm = list(SA.vm)
        s.role(A, SA, qtok); s.role(B, SB_, qtok)
        hdr = open(f"cdna_kernels/{NAME}.s.ref").read().split("\n")
        L = [l for l in hdr[:9]]
        L.append(f"; @launch grid=(256,1,1) block=(256,1,1) lds={LDS}")
        L.append(f'.amdgcn_target "amdgcn-amd-amdhsa--gfx950"\n.text\n.globl {NAME}_kernel\n.p2align 8\n.type {NAME}_kernel,@function\n{NAME}_kernel:')
        for nm, seg in SA.segs + SB_.segs[1:]:
            L.append(f"; ---- {nm}")
            L += [("" if l.endswith(":") or l.startswith(".") else "    ") + l for l in seg]
        L.append("L_END:\n    s_endpgm")
        L.append(f""".section .rodata,"a"
.p2align 6
.amdhsa_kernel {NAME}_kernel
  .amdhsa_next_free_vgpr 512
  .amdhsa_next_free_sgpr 102
  .amdhsa_accum_offset 256
  .amdhsa_group_segment_fixed_size 0
  .amdhsa_kernarg_size 48
  .amdhsa_user_sgpr_count 2
  .amdhsa_user_sgpr_kernarg_segment_ptr 1
  .amdhsa_system_sgpr_workgroup_id_x 1
.end_amdhsa_kernel
""")
        return "\n".join(L)


def options(argv):
    p = argparse.ArgumentParser()
    il = lambda x: [int(c) for c in x if c.isdigit()]
    p.add_argument("-o", default=f"cdna_kernels/{NAME}.s")
    p.add_argument("--onesA", type=il, default=[0, 1, 2, 3, 4, 5])
    p.add_argument("--onesB", type=il, default=[0, 1, 2, 3, 4])
    p.add_argument("--lat", type=int, default=5)
    p.add_argument("--qlat", type=int, default=2)
    p.add_argument("--exd", type=int, default=2)
    p.add_argument("--barpos", type=int, default=0)
    p.add_argument("--dgap", type=int, default=1)
    p.add_argument("--dearly", type=float, default=0.02)
    p.add_argument("--iters", type=int, default=300000)
    p.add_argument("--iters2", type=int, default=100000)
    p.add_argument("--seed", type=int, default=1)
    p.add_argument("--nt", type=int, default=0)
    p.add_argument("--ntq", type=int, default=0)
    p.add_argument("--nts", type=int, default=0)
    p.add_argument("--prof", type=int, default=0)
    p.add_argument("--pat", type=int, default=0)
    return p.parse_args(argv)


if __name__ == "__main__":
    o = options(sys.argv[1:])
    txt = Gen(o).build()
    open(o.o, "w").write(txt)
    print("; wrote", o.o, len(txt), "bytes")
```
